```python
import torch

def _softmax(x, axis=-1):
    return torch.softmax(x, dim=axis)
def _gelu(x):
    return torch.nn.functional.gelu(x, approximate="tanh")
def _silu(x):
    return torch.nn.functional.silu(x)
def _sigmoid(x):
    return torch.sigmoid(x)
def _layernorm(x, axis=-1, eps=1e-5):
    m = x.mean(dim=axis, keepdim=True)
    v = x.var(dim=axis, keepdim=True, unbiased=False)
    return (x - m) / torch.sqrt(v + eps)
def _scatter_add(tgt, idx, src, axis=0):
    return tgt.clone().index_add_(axis, idx, src)
def _segment_sum(src, seg, n):
    out = torch.zeros((n,) + src.shape[1:], dtype=src.dtype)
    return out.index_add_(0, seg, src)
def _pad(x, pw):
    flat = tuple(v for pair in reversed(pw) for v in pair)
    return torch.nn.functional.pad(x, flat)

kernel_name = 'standalone__groupnorm__prompt'

def setup_inputs():

    _w = (lambda a: (lambda t: t.to(torch.bfloat16) if t.is_floating_point() else t)(torch.as_tensor(a)))
    B = 2
    G = 32
    cpg = max(1, 1024 // G)
    C = G * cpg
    H, W = 32, 2048
    return {
        "x": _w(abs((lambda *s: torch.randn(*s, dtype=torch.bfloat16) * 0.05)(B, C, H, W))),
        "g": _w((lambda *s: torch.randn(*s, dtype=torch.bfloat16) * 0.05)(C) + 1.0),
        "b": _w((lambda *s: torch.randn(*s, dtype=torch.bfloat16) * 0.4)(C)),
    }

def reference(x, g, b):
    G = 32
    B, C, H, W = x.shape[0], x.shape[1], x.shape[2], x.shape[3]
    xr = x.reshape(B, G, C // G, H, W)
    mu = xr.mean(axis=(2, 3, 4), keepdims=True)
    var = ((xr - mu) ** 2).mean(axis=(2, 3, 4), keepdims=True)
    xn = (xr - mu) / torch.sqrt(var + 1e-5)
    xn = xn.reshape(B, C, H, W)
    return xn * g[None, :, None, None] + b[None, :, None, None]
```

```python
from build import build
def mk(name, karg, span, base=0, src="h4.s", thr=640, npos=32):
    s = open(src).read()
    s = s.replace("next_free_sgpr 70", "next_free_sgpr 96")
    step = span // (2*npos)
    pre = f"""    s_memrealtime s[66:67]
    s_load_dwordx2 s[72:73], s[0:1], {karg}
    s_load_dwordx2 s[80:81], s[0:1], 32
    v_readfirstlane_b32 s28, v0
    s_mov_b32 s74, 0x40000000
    s_mov_b32 s75, 0x20000
    v_mov_b32 v1, 0
    s_lshr_b32 s28, s28, 6
    s_waitcnt lgkmcnt(0)
    s_cmp_lg_u32 s28, 1
    s_cbranch_scc1 L_prebar
    s_cmp_lg_u32 s2, 0
    s_cbranch_scc1 L_prepoll
    s_mov_b64 exec, 1
    s_mov_b32 s70, 0
    s_mov_b32 s71, 0
    s_mov_b32 s76, 0
    s_mov_b32 s77, {base + 0x10000}
L_scan:
    s_add_u32 s26, s77, 0x20000
    buffer_load_dword v4, v1, s[72:75], s26 offen nt
    s_waitcnt vmcnt(0)
    s_memtime s[60:61]
    s_waitcnt lgkmcnt(0)
    buffer_load_dword v4, v1, s[72:75], s77 offen nt
    s_waitcnt vmcnt(0)
    s_memtime s[62:63]
    s_waitcnt lgkmcnt(0)
    s_sub_u32 s78, s62, s60
    s_add_u32 s26, s77, 0x2000
    s_memtime s[60:61]
    s_waitcnt lgkmcnt(0)
    buffer_load_dword v4, v1, s[72:75], s26 offen nt
    s_waitcnt vmcnt(0)
    s_memtime s[62:63]
    s_waitcnt lgkmcnt(0)
    s_sub_u32 s79, s62, s60
    s_min_u32 s78, s78, s79
    s_cmp_lt_u32 s76, {npos}
    s_cselect_b32 s79, 1, 0x10000
    s_cmp_lt_u32 s78, {thr}
    s_cselect_b32 s79, s79, 0
    s_add_u32 s70, s70, s79
    s_add_u32 s71, s71, s78
    s_add_u32 s77, s77, {step}
    s_add_u32 s76, s76, 1
    s_cmp_lt_u32 s76, {2*npos}
    s_cbranch_scc1 L_scan
    v_mov_b32 v4, 1
    global_store_dword v1, v4, s[80:81] offset:224 sc0 sc1
    v_mov_b32 v4, s70
    v_mov_b32 v5, s71
    global_store_dwordx2 v1, v[4:5], s[80:81] offset:16
    s_mov_b64 exec, -1
L_prepoll:
    s_mov_b32 s76, 0
L_pp:
    global_load_dword v4, v1, s[80:81] offset:224 sc0 sc1
    s_waitcnt vmcnt(0)
    v_cmp_eq_u32 vcc, 0, v4
    s_add_u32 s76, s76, 1
    s_cbranch_vccz L_prebar
    s_sleep 64
    s_cmp_lt_u32 s76, 0x40000
    s_cbranch_scc1 L_pp
L_prebar:
    s_barrier
"""
    s = s.replace("    s_load_dwordx2 s[16:17], s[0:1], 0\n", pre + "    s_load_dwordx2 s[16:17], s[0:1], 0\n", 1)
    t = f"""    s_cmp_lg_u32 s2, 0
    s_cbranch_scc1 L_end
    s_cmp_lg_u32 s28, 1
    s_cbranch_scc1 L_end
    s_and_b32 s68, s70, 0xffff
    s_lshr_b32 s68, s68, 1
    s_mul_i32 s68, s68, 40
    s_lshr_b32 s69, s70, 16
    s_add_u32 s68, s68, s69
    s_mul_i32 s68, s68, 100
    s_add_u32 s68, s68, 30000
L_spin:
    s_memrealtime s[62:63]
    s_waitcnt lgkmcnt(0)
    s_sub_u32 s62, s62, s66
    s_cmp_lt_u32 s62, s68
    s_cbranch_scc1 L_spin
L_end:
"""
    s = s.replace("L_end:\n", t)
    open(name + ".s", "w").write(s); build(name + ".s")
if __name__ == "__main__":
    mk("dg6_x", 0, 1 << 28)
    mk("dg6_o", 24, 1 << 28)
    mk("dg6_wa", 40, 1 << 29, 0)
    mk("dg6_wb", 40, 1 << 29, 1 << 29)
```

```python
from build import build
HDR = """; groupnorm: x(2,1024,32,2048) bf16, G=32 -> 64 groups of 4 MiB
{extra}; @launch grid=({grid},1,1) block=({block},1,1) lds={lds}
.amdgcn_target "amdgcn-amd-amdhsa--gfx950"
.text
.globl standalone__groupnorm__prompt_kernel
.p2align 8
.type standalone__groupnorm__prompt_kernel,@function
standalone__groupnorm__prompt_kernel:
"""
FTR = """
    s_endpgm
.section .rodata,"a"
.p2align 6
.amdhsa_kernel standalone__groupnorm__prompt_kernel
  .amdhsa_next_free_vgpr {vgpr}
  .amdhsa_next_free_sgpr {sgpr}
  .amdhsa_accum_offset {acc}
  .amdhsa_group_segment_fixed_size 0
  .amdhsa_kernarg_size 48
  .amdhsa_user_sgpr_count 2
  .amdhsa_user_sgpr_kernarg_segment_ptr 1
  .amdhsa_system_sgpr_workgroup_id_x 1
  .amdhsa_float_denorm_mode_32 3
.end_amdhsa_kernel
"""
import struct
def f32(x):
    return "0x%08x" % struct.unpack("<I", struct.pack("<f", x))[0]
class Asm:
    def __init__(self): self.l = []
    def __call__(self, s):
        for line in s.strip("\n").split("\n"):
            line = line.strip()
            if not line: continue
            self.l.append(line if line.endswith(":") else "    " + line)
    def text(self): return "\n".join(self.l)
def allreduce_row(a, v, t=None):
    for r in (8, 4, 2, 1):
        a("s_nop 1")
        a(f"v_add_f32_dpp {v}, {v}, {v} row_ror:{r} row_mask:0xf bank_mask:0xf")
def allreduce_x16(a, v, t):
    a(f"v_mov_b32 {t}, {v}\ns_nop 1\nv_permlane16_swap_b32 {v}, {t}\ns_nop 1\nv_add_f32 {v}, {v}, {t}")
def allreduce_x32(a, v, t):
    a(f"v_mov_b32 {t}, {v}\ns_nop 1\nv_permlane32_swap_b32 {v}, {t}\ns_nop 1\nv_add_f32 {v}, {v}, {t}")
def allreduce(a, v, t, lanes):
    allreduce_row(a, v, t)
    if lanes >= 32: allreduce_x16(a, v, t)
    if lanes >= 64: allreduce_x32(a, v, t)
def chan(a, m, q, mo, t, lanes, n_each):
    a(f"v_mov_b32 {mo}, {m}")
    allreduce(a, mo, t, lanes)
    a(f"v_mul_f32 {mo}, {f32(1.0/lanes)}, {mo}")
    a(f"v_sub_f32 {m}, {m}, {mo}")
    a(f"v_mul_f32 {t}, {f32(float(n_each))}, {m}")
    a(f"v_fmac_f32 {q}, {t}, {m}")
    allreduce(a, q, t, lanes)
def finalize(a, mean, m2, t0, t1, ntot):
    a(f"v_cvt_pk_bf16_f32 {t0}, {mean}, {mean}")
    a(f"v_lshlrev_b32 {t0}, 16, {t0}")
    a(f"v_sub_f32 {t1}, {mean}, {t0}")
    a(f"v_mul_f32 {m2}, {f32(1.0/ntot)}, {m2}")
    a(f"v_fmac_f32 {m2}, {t1}, {t1}")
    a(f"v_max_f32 {t1}, 0, {m2}")
    a(f"v_cmp_u_f32 vcc, {m2}, {m2}")
    a(f"s_nop 1")
    a(f"v_cndmask_b32 {m2}, {t1}, {m2}, vcc")
    a(f"v_mov_b32 {mean}, {t0}")
    a(f"v_cvt_pk_bf16_f32 {m2}, {m2}, {m2}")
    a(f"v_lshlrev_b32 {m2}, 16, {m2}")
    a(f"v_add_f32 {m2}, {f32(1e-5)}, {m2}")
    a(f"v_cvt_pk_bf16_f32 {m2}, {m2}, {m2}")
    a(f"v_lshlrev_b32 {m2}, 16, {m2}")
    a(f"v_sqrt_f32 {m2}, {m2}")
    a(f"s_nop 0")
    a(f"v_cvt_pk_bf16_f32 {m2}, {m2}, {m2}")
    a(f"v_lshlrev_b32 {m2}, 16, {m2}")
def emit(name, a, grid, block, lds, vgpr, sgpr, extra="", acc=None):
    nv = (vgpr + 3)//4*4
    src = HDR.format(grid=grid, block=block, lds=lds, extra=extra) + a.text() + FTR.format(vgpr=nv, sgpr=sgpr, acc=acc or min(nv, 256))
    open(name + ".s", "w").write(src); build(name + ".s")
```

```python
from common import Asm, f32, chan, finalize
from build import build
MF = "v_mfma_f32_4x4x4_16b_bf16"

HEADER = """; Kernarg layout for this problem (48 bytes, ptrs only, base s[0:1]):
;
;
;
; @launch grid=(256,1,1) block=(1024,1,1) lds={lds}
.amdgcn_target "amdgcn-amd-amdhsa--gfx950"
.text
.globl standalone__groupnorm__prompt_kernel
.p2align 8
.type standalone__groupnorm__prompt_kernel,@function
standalone__groupnorm__prompt_kernel:
"""
FOOTER = """
    s_endpgm
.section .rodata,"a"
.p2align 6
.amdhsa_kernel standalone__groupnorm__prompt_kernel
  .amdhsa_next_free_vgpr {vgpr}
  .amdhsa_next_free_sgpr {sgpr}
  .amdhsa_accum_offset {vgpr}
  .amdhsa_group_segment_fixed_size 0
  .amdhsa_kernarg_size 48
  .amdhsa_user_sgpr_count 2
  .amdhsa_user_sgpr_kernarg_segment_ptr 1
  .amdhsa_system_sgpr_workgroup_id_x 1
  .amdhsa_float_denorm_mode_32 3
.end_amdhsa_kernel
"""

def final(name, spin=0x10000, thr=40, ethr=50, rankk=9, force=0, eforce=0, opat=0x111 << 40):
    n = 4; NB = 3; NIT = 16; D = 42; SB = 50
    PUBW, SYNCW, INITW, SIGW, RANKW = 0, 1, 2, 3, 15
    LROW = 0; LRES = NB*512; LCFG = LRES + 16*NB; LFLG = LCFG + 4; LEAR = LCFG + 8
    lds = LCFG + 16
    pidx, eidx = 9, 7
    a = Asm()
    def c(t):
        for l in t.strip("\n").split("\n"): a.l.append("    ; " + l.strip())
    def buf(b, j): return D + 16*b + 4*j
    def only(w, label): a(f"s_cmp_lg_u32 s28, {w}\ns_cbranch_scc1 {label}")
    def addr(packed, clean, j, two):
        ref = "s16"
        if two:
            a(f"s_bitcmp1_b32 {packed}, {5+j}\ns_cselect_b32 s66, s20, s16")
            ref = "s66"
        a(f"""
        s_xor_b32 s24, {clean}, {(j >> 1) << 14 | (j & 1) << 12}
        s_add_u32 s3, s24, {ref}
        s_lshr_b32 s34, s3, 8
        s_xor_b32 s3, s3, s34
        s_lshl_b32 s34, {packed}, {13-j}
        s_xor_b32 s3, s3, s34
        s_and_b32 s3, s3, 0x2000
        s_add_u32 s24, s24, s3
        """)
    def clean(dst, packed):
        a(f"""
        s_and_b32 {dst}, {packed}, 0xfffe0000
        s_or_b32 {dst}, {dst}, s9
        s_lshr_b32 s3, {packed}, 6
        s_and_b32 s3, s3, 4096
        s_or_b32 {dst}, {dst}, s3
        """)
    def load(b, j, two=False):
        addr("s36", "s26", j, two)
        a(f"buffer_load_dwordx4 v[{buf(b,j)}:{buf(b,j)+3}], v1, s[16:19], s24 offen nt")
    def store(b, j):
        addr("s37", "s27", j, True)
        a(f"buffer_store_dwordx4 v[{buf(b,j)}:{buf(b,j)+3}], v1, s[20:23], s24 offen sc0 sc1")
    def stats_on(cb, cj):
        for k in range(4):
            r = buf(cb, cj)+k; acc = k & 1
            z = cj == 0 and k < 2
            a(f"v_dot2_f32_bf16 v{16+acc}, v{r}, s33, {'0' if z else 'v%d' % (16+acc)}")
            a(f"v_dot2_f32_bf16 v{18+acc}, v{r}, v{r}, {'0' if z else 'v%d' % (18+acc)}")
    def normalize(b, j):
        r = buf(b, j)
        Pa, Pb = f"v[{r}:{r+1}]", f"v[{r+2}:{r+3}]"
        Da, Db = "v[8:11]", "v[12:15]"
        def cv():
            a(f"v_cvt_pk_bf16_f32 v{r}, v8, v9\nv_cvt_pk_bf16_f32 v{r+1}, v10, v11\nv_cvt_pk_bf16_f32 v{r+2}, v12, v13\nv_cvt_pk_bf16_f32 v{r+3}, v14, v15")
        a(f"{MF} {Da}, v[24:25], {Pa}, v[32:35]\n{MF} {Db}, v[24:25], {Pb}, v[32:35]\ns_nop 3")
        cv()
        a(f"{MF} {Da}, v[28:29], {Pa}, 0\ns_nop 0\n{MF} {Db}, v[28:29], {Pb}, 0")
        a(f"{MF} {Da}, v[26:27], {Pa}, {Da}\ns_nop 0\n{MF} {Db}, v[26:27], {Pb}, {Db}\ns_nop 2")
        cv()
        a(f"{MF} {Da}, v[30:31], {Pa}, 0\ns_nop 0\n{MF} {Db}, v[30:31], {Pb}, 0\ns_nop 2")
        cv()
        a(f"{MF} {Da}, v[24:25], {Pa}, v[36:39]\ns_nop 0\n{MF} {Db}, v[24:25], {Pb}, v[36:39]\ns_nop 2")
        cv()
    def coefs():
        c("v4 = -mean | b<<16, v5/v6 = high/low part of 1/std, v7 = g  ->  MFMA operands")
        a("""
        s_waitcnt lgkmcnt(0)
        v_lshlrev_b32 v32, 16, v4
        v_and_b32 v36, s42, v4
        v_and_b32 v26, v5, v40
        v_and_b32 v27, v5, v41
        v_and_b32 v28, v6, v40
        v_and_b32 v29, v6, v41
        v_and_b32 v30, v7, v40
        v_and_b32 v31, v7, v41
        v_mov_b32 v33, v32
        v_mov_b32 v34, v32
        v_mov_b32 v35, v32
        v_mov_b32 v37, v36
        v_mov_b32 v38, v36
        v_mov_b32 v39, v36
        """)
    def publish(pb):
        a(f"s_mov_b32 s70, s{SB+pb}\ns_mov_b32 s71, {LROW + pb*512}\ns_call_b64 s[72:73], F_publish")
    def poll_issue(L, tb, skip=None):
        only(SYNCW, f"L_np{L}")
        if skip: a(skip + f"\ns_cbranch_scc1 L_np{L}")
        a(f"""
        s_mov_b32 s46, s{SB+tb}
        s_lshr_b32 s3, s46, 22
        s_lshl_b32 s3, s3, 9
        v_add_u32 v23, s3, v22
        global_load_dwordx2 v[20:21], v23, s[14:15] sc0 sc1
        s_lshr_b32 s3, s46, 16
        s_and_b32 s3, s3, 0x7fc
        s_load_dword s44, s[4:5], s3
        s_load_dword s45, s[6:7], s3
        L_np{L}:
        """)
    def poll_check(L, tb, rem=None, flag=None):
        only(SYNCW, f"L_nc{L}")
        if rem is not None: a(f"s_cmp_lg_i32 s31, {rem}\ns_cbranch_scc1 L_nc{L}\ns_waitcnt vmcnt(2)")
        a(f"s_mov_b32 s71, {LRES + 16*tb}\ns_call_b64 s[72:73], F_check")
        if flag: a(f"v_mov_b32 v2, {LFLG}\nv_mov_b32 v8, {flag}\nds_write_b32 v2, v8")
        a(f"L_nc{L}:")
    def spinwait(L, test, reload, sleep):
        a(f"""
        s_mov_b32 s35, 0
        L_w{L}:
        {test}
        s_add_u32 s35, s35, 1
        s_cbranch_vccz L_d{L}
        s_cmp_ge_u32 s35, {spin}
        s_cbranch_scc1 L_d{L}
        s_sleep {sleep}
        {reload}
        s_waitcnt vmcnt(0)
        s_branch L_w{L}
        L_d{L}:
        """)
    SLOTTEST = "v_lshrrev_b32 v12, 31, v21\nv_or_b32 v12, v12, v20\nv_and_b32 v12, 1, v12\nv_cmp_ne_u32 vcc, 0, v12"
    SLOTLOAD = "global_load_dwordx2 v[20:21], v23, s[14:15] sc0 sc1"
    c("""SGPRs: s[4:5] g, s[6:7] b, s[12:13] d_debug, s[14:15] d_ws, s[16:19] / s[20:23] SRD of x / out, s28 wave,
    s29 group to load, s30 q, s31 tiles left to load, s9 wave offset inside a channel,
    s36/s37 descriptor of the tile being loaded / stored (byte base | unit choice per chunk [3:0] | slot half [4]
    | chunk follows the layout of out instead of x [8:5]), s26/s27 its first address, s50..s52 descriptor per buffer""")
    a(f"""
    s_cmp_ge_u32 s2, 256
    s_cbranch_scc1 L_end
    s_load_dwordx2 s[16:17], s[0:1], 0
    s_load_dwordx2 s[20:21], s[0:1], 24
    s_load_dwordx4 s[12:15], s[0:1], 32
    s_load_dwordx4 s[4:7], s[0:1], 8
    s_memtime s[56:57]
    v_readfirstlane_b32 s28, v0
    v_and_b32 v22, 63, v0
    v_lshlrev_b32 v1, 4, v22
    s_mov_b32 s18, 0x10000000
    s_mov_b32 s19, 0x20000
    s_mov_b32 s22, 0x10000000
    s_mov_b32 s23, 0x20000
    s_and_b32 s29, s2, 3
    s_lshr_b32 s30, s2, 3
    s_lshl_b32 s26, s29, 22
    s_lshl_b32 s3, s30, 17
    s_add_u32 s26, s26, s3
    """)
    c("until the die layout is known every workgroup takes half of its chunks from either die")
    a(f"""
    s_bitcmp1_b32 s2, 2
    s_cselect_b32 s39, 25, 6
    s_bitcmp1_b32 s30, 0
    s_cselect_b32 s3, 15, 0
    s_xor_b32 s39, s39, s3
    s_or_b32 s36, s26, s39
    s_mov_b32 s{SB}, s36
    s_lshr_b32 s28, s28, 6
    s_and_b32 s9, s28, 3
    s_lshl_b32 s9, s9, 10
    s_lshr_b32 s3, s28, 2
    s_lshl_b32 s3, s3, 15
    s_or_b32 s9, s9, s3
    """)
    clean("s26", "s36")
    c("""wave 0: two loads 8 KiB apart (one per die, x or out, line picked from the clock so that no cache holds it);
    they return in order, so the gap between them is large only if the first one was the near one""")
    a(f"""
    s_lshl_b32 s35, s30, 12
    s_and_b32 s35, s35, 0x2000
    s_add_u32 s35, s35, 0x4000000
    s_cmp_lg_u32 s28, 0
    s_waitcnt lgkmcnt(0)
    s_cbranch_scc1 L_noprobe
    s_lshl_b32 s3, s2, 20
    s_add_u32 s3, s56, s3
    s_mul_i32 s3, s3, 0x9e3779b1
    s_lshr_b32 s3, s3, 5
    s_and_b32 s3, s3, 0x1fdf80
    s_add_u32 s35, s35, s3
    s_xor_b32 s34, s35, 0x2000
    s_mov_b64 exec, 1
    s_bitcmp1_b32 s30, 2
    s_cbranch_scc1 L_po
    buffer_load_dword v10, v1, s[16:19], s35 offen nt
    buffer_load_dword v10, v1, s[16:19], s34 offen nt
    s_branch L_pd
    L_po:
    buffer_load_dword v10, v1, s[20:23], s35 offen nt
    buffer_load_dword v10, v1, s[20:23], s34 offen nt
    L_pd:
    s_mov_b64 exec, -1
    s_barrier
    s_waitcnt vmcnt(1)
    s_memtime s[58:59]
    s_waitcnt vmcnt(0)
    s_memtime s[56:57]
    s_branch L_pgo
    L_noprobe:
    s_barrier
    L_pgo:
    v_mov_b32 v4, -1
    v_mov_b32 v5, -1
    """)
    c("""sentinels: member m < 52 of team t fills line m&3 of group 4*(3 + m/4) + t (complete before its first publish);
    workgroup 0 fills the slots of tiles 0..2, clears the counters and then raises the flag at d_debug+192""")
    only(INITW, "L_noown")
    a(f"""
    s_lshr_b32 s3, s2, 2
    s_cmp_ge_u32 s3, 52
    s_cbranch_scc1 L_noown
    s_and_b32 s34, s3, 3
    s_andn2_b32 s3, s3, 3
    s_add_u32 s3, s3, 12
    s_add_u32 s3, s3, s29
    s_lshl_b32 s3, s3, 2
    s_add_u32 s3, s3, s34
    s_lshl_b32 s3, s3, 7
    v_lshrrev_b32 v2, 1, v1
    v_add_u32 v2, s3, v2
    s_mov_b64 exec, 0xffff
    global_store_dwordx2 v2, v[4:5], s[14:15] sc0 sc1
    s_mov_b64 exec, -1
    L_noown:
    s_lshl_b32 s3, s2, 4
    s_add_u32 s3, s3, s28
    s_cmp_lg_u32 s3, 1
    s_cbranch_scc1 L_noinit
    v_mov_b32 v6, -1
    v_mov_b32 v7, -1
    v_add_u32 v2, 0x1000, v1
    global_store_dwordx4 v1, v[4:7], s[14:15] sc0 sc1
    global_store_dwordx4 v1, v[4:7], s[14:15] offset:1024 sc0 sc1
    global_store_dwordx4 v1, v[4:7], s[14:15] offset:2048 sc0 sc1
    global_store_dwordx4 v1, v[4:7], s[14:15] offset:3072 sc0 sc1
    global_store_dwordx4 v2, v[4:7], s[14:15] sc0 sc1
    global_store_dwordx4 v2, v[4:7], s[14:15] offset:1024 sc0 sc1
    v_mul_u32_u24 v2, 4352, v22
    v_add_u32 v2, 0x80000, v2
    v_mov_b32 v8, 0
    s_mov_b64 exec, 0xff
    global_store_dword v2, v8, s[14:15] sc0 sc1
    global_store_dword v2, v8, s[14:15] offset:2048 sc0 sc1
    s_mov_b64 exec, -1
    L_noinit:
    """)
    flat = [(b, j) for b in range(NB) for j in range(n)]
    for idx, (b, j) in enumerate(flat):
        c(f"---- prologue: tile {b} chunk {j}")
        if j == 0 and b > 0:
            a(f"s_add_u32 s26, s26, {4<<22}\ns_add_u32 s36, s36, {4<<22}\ns_andn2_b32 s36, s36, 31\ns_or_b32 s36, s36, s39\ns_mov_b32 s{SB+b}, s36")
        if idx == eidx - 2:
            only(SYNCW, "L_nae")
            a("v_mov_b32 v2, 0\nglobal_load_dword v20, v2, s[12:13] offset:64 sc0 sc1\nL_nae:")
        if idx == eidx:
            m = (15 << j) & 15
            c("early vote word (final: all 32 voters counted) -> take the near units from here on")
            a(f"""
            v_mov_b32 v2, {LEAR}
            ds_read_b32 v8, v2
            s_waitcnt lgkmcnt(0)
            v_readfirstlane_b32 s60, v8
            s_nop 3
            {"s_xor_b32 s60, s60, %d" % eforce if eforce else ""}
            s_bfe_u32 s34, s60, 0xa0008
            s_lshr_b32 s3, s60, 20
            s_add_u32 s3, s3, s2
            s_bitcmp1_b32 s3, 2
            s_cselect_b32 s3, 15, 0
            s_cmp_ge_u32 s34, 240
            s_cselect_b32 s35, 15, 0
            s_xor_b32 s3, s3, s35
            s_and_b32 s35, s39, 15
            s_sub_u32 s34, s34, {240-ethr+1}
            s_cmp_lt_u32 s34, {2*ethr-1}
            s_cselect_b32 s3, s35, s3
            s_andn2_b32 s39, s39, 15
            s_or_b32 s39, s39, s3
            s_and_b32 s3, s3, {m}
            s_andn2_b32 s36, s36, {m}
            s_or_b32 s36, s36, s3
            s_mov_b32 s{SB+b}, s36
            """)
        if idx == n-1:
            only(PUBW, "L_naf")
            a("v_mov_b32 v2, 0\nglobal_load_dword v20, v2, s[12:13] offset:192 sc0 sc1\nL_naf:")
        if idx == pidx: poll_issue("p", 0)
        if idx == 11:
            a(f"v_mov_b32 v2, {LCFG}\nds_read_b32 v8, v2\nv_mov_b32 v2, {LRES}\nds_read_b128 v[4:7], v2")
        if idx == 2:
            c("pull this kernel's code into the L2 of this XCD, 1 KiB per workgroup")
            only(3, "L_ncpf")
            a("""
            s_getpc_b64 s[58:59]
            L_pc:
            s_and_b32 s3, s30, 15
            s_lshl_b32 s3, s3, 10
            s_min_u32 s3, s3, L_end-L_pc-1024
            s_add_u32 s58, s58, s3
            s_addc_u32 s59, s59, 0
            s_and_b32 s58, s58, -16
            v_mov_b32 v13, s59
            v_add_co_u32 v12, vcc, s58, v1
            s_nop 1
            v_addc_co_u32 v13, vcc, 0, v13, vcc
            global_load_dwordx4 v[12:15], v[12:13], off
            L_ncpf:
            """)
        load(b, j)
        if idx == 1:
            c("vote 0..15 (towards 15: the constant of the probed buffer is 1); rides in the low bits of the first M2")
            only(0, "L_npw")
            a(f"""
            s_getreg_b32 s55, hwreg(HW_REG_XCC_ID, 0, 3)
            s_lshr_b32 s34, s55, 2
            s_bitcmp1_b32 s30, 2
            s_cselect_b32 s3, s20, s16
            s_add_u32 s35, s35, s3
            s_lshr_b32 s3, s35, 13
            s_xor_b32 s34, s34, s3
            s_lshr_b32 s3, s35, 21
            s_xor_b32 s34, s34, s3
            s_waitcnt lgkmcnt(0)
            s_sub_u32 s56, s56, s58
            s_lshr_b32 s56, s56, 4
            s_min_u32 s56, s56, 15
            s_bitcmp0_b32 s34, 0
            s_cselect_b32 s3, 15, 0
            s_xor_b32 s56, s56, s3
            s_cmp_ge_u32 s30, 4
            s_cbranch_scc1 L_nev
            s_lshl_b32 s3, s55, 20
            s_cmp_eq_u32 s2, 0
            s_cselect_b32 s3, s3, 0
            s_lshl_b32 s34, s56, 8
            s_or_b32 s3, s3, s34
            s_or_b32 s3, s3, 1
            v_mov_b32 v2, 0
            v_mov_b32 v8, s3
            s_mov_b64 exec, 1
            global_atomic_add v2, v8, s[12:13] offset:64 sc1
            s_mov_b64 exec, -1
            L_nev:
            s_lshl_b32 s55, s55, 4
            s_or_b32 s56, s56, s55
            L_npw:
            s_lshl_b32 s3, s2, 4
            s_add_u32 s3, s3, s28
            s_cmp_lg_u32 s3, 1
            s_cbranch_scc1 L_nif
            v_mov_b32 v2, 0
            v_mov_b32 v8, 1
            s_waitcnt vmcnt(2)
            s_mov_b64 exec, 1
            global_store_dword v2, v8, s[12:13] offset:192 sc0 sc1
            s_mov_b64 exec, -1
            L_nif:
            s_barrier
            """)
        if idx < 2: continue
        if idx == 2:
            c("constants: v40/v41 identity pattern of a 4x4x4 A operand, v[24:25] identity, v3 / v22 LDS row addresses")
            a(f"""
            s_mov_b32 s33, 0x3f803f80
            s_mov_b32 s42, 0xffff0000
            s_mov_b32 s40, 0x7fffff80
            s_mov_b32 s41, 64
            v_lshrrev_b32 v3, 4, v0
            v_lshlrev_b32 v3, 3, v3
            v_lshlrev_b32 v22, 3, v22
            v_mov_b32 v23, v22
            v_and_b32 v8, 1, v0
            v_lshlrev_b32 v8, 4, v8
            v_mov_b32 v9, 0xffff
            v_lshlrev_b32 v9, v8, v9
            v_and_b32 v8, 2, v0
            v_cmp_eq_u32 vcc, 0, v8
            v_mov_b32 v2, {LFLG}
            v_mov_b32 v8, 0
            v_cndmask_b32 v40, 0, v9, vcc
            v_cndmask_b32 v41, v9, 0, vcc
            v_and_b32 v24, s33, v40
            v_and_b32 v25, s33, v41
            ds_write_b32 v2, v8
            s_mov_b32 s62, 0
            s_mov_b32 s63, 0x7fffffff
            s_mov_b32 s64, 0x7fffffff
            s_mov_b32 s43, 0
            s_and_b32 s61, s2, 7
            s_mul_i32 s61, s61, 4352
            s_add_u32 s61, s61, 0x80000
            s_mov_b32 s10, {opat & 0xffffffff}
            s_mov_b32 s11, {opat >> 32}
            s_add_u32 s29, s29, {4*NB}
            s_mov_b32 s31, {NIT - NB}
            """)
        if idx == 11:
            c("team verdict: [2] die of member 0, [3] x constant, [5] x undecided, [6] out constant, [7] out undecided")
            a(f"""
            s_waitcnt lgkmcnt(0)
            v_readfirstlane_b32 s60, v8
            s_nop 3
            s_add_u32 s3, s2, s60
            s_lshr_b32 s3, s3, 2
            s_lshr_b32 s34, s60, 3
            s_xor_b32 s3, s3, s34
            s_bitcmp1_b32 s3, 0
            s_cselect_b32 s3, 0x1f, 0
            s_bitcmp1_b32 s60, 5
            s_cselect_b32 s39, s39, s3
            s_xor_b32 s34, s34, s60
            s_bitcmp1_b32 s34, 3
            s_cselect_b32 s54, 15, 0
            s_and_b32 s3, s60, 0xa0
            s_cselect_b64 s[10:11], 0, s[10:11]
            """)
        a("s_waitcnt vmcnt(2)")
        if idx != 5: stats_on(*flat[idx-2])
        if idx == eidx - 1:
            only(SYNCW, "L_nec")
            a("v_mov_b32 v2, 0")
            spinwait("e", "v_and_b32 v8, 0xff, v20\nv_cmp_gt_u32 vcc, 32, v8", "global_load_dword v20, v2, s[12:13] offset:64 sc0 sc1", 8)
            a(f"v_mov_b32 v2, {LEAR}\nds_write_b32 v2, v20\ns_waitcnt lgkmcnt(0)\nL_nec:")
        if idx == 4:
            c("tile 0 is published one step early, after workgroup 0 has initialised its slots")
            a("s_waitcnt vmcnt(1)")
            stats_on(0, 3)
            only(PUBW, "L_df")
            a("v_mov_b32 v2, 0")
            spinwait("f", "v_cmp_eq_u32 vcc, 0, v20", "global_load_dword v20, v2, s[12:13] offset:192 sc0 sc1", 1)
            publish(0)
            a(f"s_cmp_eq_u32 s28, {PUBW}\ns_cselect_b32 s40, 0x7fffffff, s40\ns_mov_b32 s41, 0\ns_mov_b32 s56, 0")
            continue
        if idx == 9:
            publish(1); continue
        if idx == pidx + 1:
            lo, hi = 240 - thr, 240 + thr
            c("all 64 members have published tile 0 (so every slot of the team is initialised): count their votes")
            only(SYNCW, "L_nocfg")
            spinwait("v", SLOTTEST, SLOTLOAD, 8)
            a("""
            v_readlane_b32 s34, v21, 0
            v_and_b32 v8, 15, v21
            v_and_b32 v9, 8, v0
            v_lshlrev_b32 v9, 1, v9
            v_lshlrev_b32 v8, v9, v8
            """)
            for r in (1, 2, 4, 8):
                a(f"s_nop 1\nv_add_u32_dpp v8, v8, v8 row_ror:{r} row_mask:0xf bank_mask:0xf")
            a(f"""
            s_nop 0
            v_readlane_b32 s56, v8, 0
            v_readlane_b32 s57, v8, 16
            v_readlane_b32 s58, v8, 32
            v_readlane_b32 s59, v8, 48
            s_lshr_b32 s34, s34, 4
            s_and_b32 s34, s34, 4
            s_nop 1
            s_add_u32 s56, s56, s57
            s_add_u32 s58, s58, s59
            s_add_u32 s56, s56, s58
            s_and_b32 s57, s56, 0xffff
            s_lshr_b32 s58, s56, 16
            s_cmp_ge_u32 s57, {hi}
            s_cselect_b32 s59, 8, 0
            s_or_b32 s34, s34, s59
            s_sub_u32 s57, s57, {lo+1}
            s_cmp_lt_u32 s57, {hi-lo-1}
            s_cselect_b32 s59, 32, 0
            s_or_b32 s34, s34, s59
            s_cmp_ge_u32 s58, {hi}
            s_cselect_b32 s59, 64, 0
            s_or_b32 s34, s34, s59
            s_sub_u32 s58, s58, {lo+1}
            s_cmp_lt_u32 s58, {hi-lo-1}
            s_cselect_b32 s59, 0x80, 0
            s_or_b32 s34, s34, s59
            {"s_xor_b32 s34, s34, %d" % force if force else ""}
            v_mov_b32 v8, s34
            v_mov_b32 v2, {LCFG}
            ds_write_b32 v2, v8
            s_mov_b32 s71, {LRES}
            s_call_b64 s[72:73], F_check
            s_mov_b32 s40, 0x7fffffff
            L_nocfg:
            """)
        a("s_barrier")
    bt = NIT % NB
    a("L_loop:")
    for b in range(NB):
        pb = (b + NB - 1) % NB; nb = (b + 1) % NB
        c(f"================ buffer {b}: store tile i-3, load tile i")
        a(f"s_mov_b32 s37, s{SB+b}")
        clean("s27", "s37")
        a("s_lshl_b32 s3, s29, 5\ns_add_u32 s3, s3, s30\ns_lshl_b32 s36, s3, 17\ns_or_b32 s36, s36, s39")
        clean("s26", "s36")
        c("one chunk of each of the last three tiles follows the die layout of out (relieves the die link in the tail)")
        a(f"""
        s_and_b32 s3, s10, 15
        s_mul_i32 s3, s3, 17
        s_bfe_u32 s34, s30, 0x20002
        s_lshr_b32 s3, s3, s34
        s_and_b32 s3, s3, 15
        s_and_b32 s34, s3, s54
        s_xor_b32 s36, s36, s34
        s_lshl_b32 s3, s3, 5
        s_or_b32 s36, s36, s3
        s_lshr_b64 s[10:11], s[10:11], 4
        s_mov_b32 s{SB+b}, s36
        s_add_u32 s29, s29, 4
        """)
        for j in range(n):
            L = f"l{b}_{j}"
            es = ((b - bt) % NB)*n + j
            c(f"---- buffer {b} chunk {j}")
            lastload = b == (NIT-1) % NB and j == n-1
            if lastload:
                c("last load of this workgroup: count the arrival")
                a("s_cmp_lg_u32 s31, 1\ns_cbranch_scc1 L_nsg")
                only(SIGW, "L_nsg")
                a("s_mov_b32 s43, 1\ns_add_u32 s3, s61, 2048\ns_atomic_add s43, s[14:15], s3 glc\nL_nsg:")
            if j == 2: poll_issue(L, nb, "s_cmp_lt_i32 s31, 1")
            if es == 3: poll_issue(L + "x", (NIT-1) % NB, "s_cmp_lg_i32 s31, 0")
            if j == 0:
                coefs()
                c("arrival rank among the 32 workgroups w mod 8")
                a(f"""
                s_cmp_lt_u32 s28, {RANKW}
                s_cbranch_scc1 L_nr{L}
                s_cmp_lt_i32 s31, 1
                s_cbranch_scc1 L_nr{L}
                s_mov_b32 s63, 1
                s_atomic_add s63, s[14:15], s61 glc
                L_nr{L}:
                """)
            if j == 2: a("s_sub_u32 s64, s63, s62\ns_add_u32 s62, s62, 32")
            normalize(b, j)
            if es == 0:
                c("no loads left: finish and publish the last tile, then wait until nobody has loads left to issue")
                a("s_cmp_lg_u32 s31, 0\ns_cbranch_scc1 L_ng")
                a("s_waitcnt vmcnt(2)"); stats_on(pb, 2)
                a("s_waitcnt vmcnt(0)"); stats_on(pb, 3)
                publish(pb)
                only(SYNCW, "L_dg")
                a("v_mov_b32 v2, 0\nglobal_load_dword v8, v2, s[12:13] offset:160 sc0 sc1\ns_waitcnt vmcnt(0)")
                spinwait("g", "v_cmp_gt_u32 vcc, 8, v8", "global_load_dword v8, v2, s[12:13] offset:160 sc0 sc1", 1)
                a("s_barrier")
                poll_issue(L + "y", nb)
                a("L_ng:")
            store(b, j)
            a(f"s_cmp_lt_i32 s31, 1\ns_cbranch_scc1 L_e{L}")
            load(b, j, True)
            if lastload:
                a("""
                s_cmp_lg_u32 s31, 1
                s_cbranch_scc1 L_nop
                s_waitcnt lgkmcnt(0)
                s_cmp_lg_u32 s43, 31
                s_cbranch_scc1 L_nop
                s_mov_b32 s43, 1
                s_atomic_add s43, s[12:13], 160
                L_nop:
                """)
            if j == 2:
                c("the workgroups furthest ahead let their queue run dry once")
                a(f"s_cmp_ge_i32 s64, {rankk}\ns_cbranch_scc1 L_nth{L}\ns_waitcnt vmcnt(0)\nL_nth{L}:")
            a(f"s_waitcnt vmcnt({3 if b == 0 and j == 0 else 4})")
            stats_on(*((b, j-2) if j >= 2 else (pb, 2+j)))
            if j == 1:
                publish(pb)
                a(f"s_branch L_f{L}\nL_e{L}:\ns_barrier\nL_f{L}:")
            elif es == NB*n-1:
                poll_check(L, nb)
                a(f"s_branch L_f{L}\nL_e{L}:\ns_endpgm\nL_f{L}:\ns_barrier")
            else:
                if j == 3: poll_check(L, nb)
                a(f"L_e{L}:\ns_barrier")
            if es == 1: poll_check(L + "y", nb, rem=0)
            if es == 4: poll_check(L + "x", (NIT-1) % NB, rem=-1)
        a(f"v_mov_b32 v2, {LRES + 16*nb}\nds_read_b128 v[4:7], v2\ns_sub_u32 s31, s31, 1")
    a("s_branch L_loop")
    c("""F_publish: lane sums v16..v19 -> (mean, M2) per 16 lanes -> LDS rows at s71 -> barrier -> wave 0 merges the 64 rows
    and stores the slot of descriptor s70 (mean with bit 0 clear, M2 with the sign clear: never the sentinel)""")
    a("F_publish:")
    a(f"""
    s_nop 1
    v_add_f32 v8, v16, v17
    v_add_f32 v9, v18, v19
    v_mul_f32 v10, {f32(1.0/32)}, v8
    v_fma_f32 v9, -v8, v10, v9
    """)
    chan(a, "v10", "v9", "v8", "v11", 16, 32)
    a("v_add_u32 v2, s71, v3\nds_write_b64 v2, v[8:9]\ns_waitcnt lgkmcnt(0)\ns_barrier")
    only(PUBW, "L_pubret")
    a("""
    v_add_u32 v2, s71, v22
    ds_read_b64 v[10:11], v2
    s_lshr_b32 s3, s70, 17
    s_lshl_b32 s3, s3, 4
    s_lshr_b32 s34, s70, 1
    s_and_b32 s34, s34, 8
    s_add_u32 s3, s3, s34
    v_mov_b32 v2, s3
    s_waitcnt lgkmcnt(0)
    """)
    chan(a, "v10", "v11", "v8", "v9", 64, 512)
    a("""
    v_and_b32 v8, -2, v8
    v_add_u32 v11, s41, v11
    v_and_b32 v9, s40, v11
    v_or_b32 v9, s56, v9
    s_mov_b64 exec, 1
    global_store_dwordx2 v2, v[8:9], s[14:15] sc0 sc1
    s_mov_b64 exec, -1
    L_pubret:
    s_setpc_b64 s[72:73]
    """)
    c("""F_check: v[20:21] = the 64 slots of a group (re-read until all valid) -> mean, std rounded as the reference rounds
    -> {-mean | b<<16, 1/std high, 1/std low, g} into LDS at s71""")
    a("F_check:")
    spinwait("c", SLOTTEST, SLOTLOAD, 4)
    a("v_mov_b32 v10, v20\nv_and_b32 v9, s40, v21")
    chan(a, "v10", "v9", "v8", "v11", 64, 32768)
    finalize(a, "v8", "v9", "v10", "v11", 1 << 21)
    a("""
    s_waitcnt lgkmcnt(0)
    v_rcp_f32 v9, v9
    s_bitcmp1_b32 s46, 17
    s_cselect_b32 s3, 0, 16
    s_lshl_b32 s44, s44, s3
    s_and_b32 s44, s44, 0xffff0000
    s_lshl_b32 s45, s45, s3
    s_and_b32 s45, s45, 0xffff0000
    v_xor_b32 v8, 0x80000000, v8
    v_lshrrev_b32 v8, 16, v8
    v_or_b32 v8, s45, v8
    v_cvt_pk_bf16_f32 v12, v9, v9
    v_and_b32 v10, s42, v12
    v_sub_f32 v10, v9, v10
    v_cvt_pk_bf16_f32 v10, v10, v10
    v_mov_b32 v9, v12
    s_lshr_b32 s3, s44, 16
    s_or_b32 s44, s44, s3
    v_mov_b32 v11, s44
    v_mov_b32 v2, s71
    ds_write_b128 v2, v[8:11]
    s_waitcnt lgkmcnt(0)
    s_setpc_b64 s[72:73]
    L_end:
    """)
    src = HEADER.format(lds=lds) + a.text() + FOOTER.format(vgpr=92, sgpr=74)
    open(name + ".s", "w").write(src); build(name + ".s")
if __name__ == "__main__":
    final("FIN")
```
